```python
import torch

def _softmax(x, axis=-1):
    return torch.softmax(x, dim=axis)
def _gelu(x):
    return torch.nn.functional.gelu(x, approximate="tanh")
def _silu(x):
    return torch.nn.functional.silu(x)
def _sigmoid(x):
    return torch.sigmoid(x)
def _layernorm(x, axis=-1, eps=1e-5):
    m = x.mean(dim=axis, keepdim=True)
    v = x.var(dim=axis, keepdim=True, unbiased=False)
    return (x - m) / torch.sqrt(v + eps)
def _scatter_add(tgt, idx, src, axis=0):
    return tgt.clone().index_add_(axis, idx, src)
def _segment_sum(src, seg, n):
    out = torch.zeros((n,) + src.shape[1:], dtype=src.dtype)
    return out.index_add_(0, seg, src)
def _pad(x, pw):
    flat = tuple(v for pair in reversed(pw) for v in pair)
    return torch.nn.functional.pad(x, flat)

kernel_name = 'parallel_sum__mha_block__glu_gated_swiglu__prompt'

def setup_inputs():

    _w = (lambda a: (lambda t: t.to(torch.bfloat16) if t.is_floating_point() else t)(torch.as_tensor(a)))
    def _A_setup():
        B, S, D, H = 1, 2048, 512, 32
        return {
            "x": _w((lambda *s: torch.randn(*s, dtype=torch.bfloat16) * 0.05)(B, S, D)),
            "wqkv": _w((lambda *s: torch.randn(*s, dtype=torch.bfloat16) * 0.05)(D, 3 * D)),
            "wo": _w((lambda *s: torch.randn(*s, dtype=torch.bfloat16) * 0.05)(D, D)),
        }
    _A_in = _A_setup()

    def _B_setup():
        B, S, D, F = 1, 2048, 512, 1792
        return {
            "x": _w((lambda *s: torch.randn(*s, dtype=torch.bfloat16) * 0.05)(B, S, D)),
            "w1": _w((lambda *s: torch.randn(*s, dtype=torch.bfloat16) * 0.4)(D, F) * (2.0 / D) ** 0.5),
            "w3": _w((lambda *s: torch.randn(*s, dtype=torch.bfloat16) * 0.4)(D, F) * (2.0 / D) ** 0.5),
            "w2": _w((lambda *s: torch.randn(*s, dtype=torch.bfloat16) * 0.4)(F, D) * (2.0 / F) ** 0.5),
        }
    _B_in = _B_setup()

    return {
        "A_x": _A_in["x"],
        "A_wqkv": _A_in["wqkv"],
        "A_wo": _A_in["wo"],
        "B_x": _B_in["x"],
        "B_w1": _B_in["w1"],
        "B_w3": _B_in["w3"],
        "B_w2": _B_in["w2"],
    }

def reference(A_x, A_wqkv, A_wo, B_x, B_w1, B_w3, B_w2):
    def _A_ref(x, wqkv, wo):
        B, S, D = x.shape
        H = 32
        Dh = D // H
        qkv = (lambda x, *d: x.permute(*d))((x @ wqkv).reshape(B, S, 3, H, Dh), 2, 0, 3, 1, 4)
        q, k, v = qkv[0], qkv[1], qkv[2]
        scores = torch.einsum("bhqd,bhkd->bhqk", q, k) * (Dh ** -0.5)
        p = _softmax(scores, axis=-1)
        o = torch.einsum("bhqk,bhkd->bhqd", p, v)
        return (lambda x, *d: x.permute(*d))(o, 0, 2, 1, 3).reshape(B, S, D) @ wo

    def _B_ref(x, w1, w3, w2):
        gate = torch.einsum("bsd,df->bsf", x, w1)
        up = torch.einsum("bsd,df->bsf", x, w3)
        h = _silu(gate) * up
        out = torch.einsum("bsf,fd->bsd", h, w2)
        return out

    x = A_x
    xn = _layernorm(x, axis=-1)
    return x + _A_ref(xn, A_wqkv, A_wo) + _B_ref(xn, B_w1, B_w3, B_w2)
```

```python
import re

def _regs(tok):
    tok = tok.strip()
    neg = tok.startswith('-')
    if neg: tok = tok[1:]
    m = re.fullmatch(r'abs\((.*)\)', tok)
    if m: tok = m.group(1)
    m = re.fullmatch(r'\|(.*)\|', tok)
    if m: tok = m.group(1)
    m = re.fullmatch(r'([vas])(\d+)', tok)
    if m: return [(m.group(1), int(m.group(2)))]
    m = re.fullmatch(r'([vas])\[(\d+):(\d+)\]', tok)
    if m: return [(m.group(1), i) for i in range(int(m.group(2)), int(m.group(3)) + 1)]
    if tok == 'vcc': return [('s', 'vcc')]
    if tok == 'exec': return [('s', 'exec')]
    if tok == 'm0': return [('s', 'm0')]
    return []

TRANS = ('v_exp_f32', 'v_log_f32', 'v_rcp_f32', 'v_rsq_f32', 'v_sqrt_f32', 'v_sin_f32', 'v_cos_f32')

class Ins:
    def __init__(self, text):
        self.text = text
        t = text.split(';')[0].strip()
        self.label = t.endswith(':')
        self.directive = t.startswith('.')
        self.op = '' if (self.label or self.directive or not t) else t.split()[0]
        self.rd = []; self.wr = []
        self.kind = 'none'
        if not self.op: return
        rest = t[len(self.op):].strip()
        ops = [o.strip() for o in re.split(r',(?![^\[]*\])', rest)] if rest else []
        clean = []
        mods = ''
        for o in ops:
            parts = o.split()
            if parts:
                clean.append(parts[0])
                mods += ' ' + ' '.join(parts[1:])
        self.ops = clean; self.mods = mods
        op = self.op
        R = lambda i: _regs(clean[i]) if i < len(clean) else []
        if op.startswith('v_mfma') or op.startswith('v_smfmac'):
            self.kind = 'mfma'
            self.wr = R(0); self.A = R(1); self.B = R(2); self.C = R(3)
            self.rd = self.A + self.B + self.C
            self.passes = 8 if '32x32' in op else 4
        elif op.startswith('v_cmp'):
            self.kind = 'valu'; self.wr = R(0); self.rd = R(1) + R(2)
        elif op in ('v_readfirstlane_b32', 'v_readlane_b32'):
            self.kind = 'valu'; self.wr = R(0); self.rd = R(1) + R(2)
        elif op.startswith('v_permlane'):
            self.kind = 'valu'; self.wr = R(0) + R(1); self.rd = R(0) + R(1)
        elif op.startswith('v_'):
            self.kind = 'valu'; self.wr = R(0)
            self.rd = sum((R(i) for i in range(1, len(clean))), [])
            if op.startswith(('v_fmac', 'v_dot2c', 'v_pk_fmac')) or 'UNUSED_PRESERVE' in mods:
                self.rd += R(0)
            if op.startswith(('v_add_co', 'v_sub_co', 'v_addc_co', 'v_subb_co')):
                self.wr = R(0) + R(1); self.rd = sum((R(i) for i in range(2, len(clean))), [])
        elif op.startswith('ds_read') or op.startswith('ds_bpermute') or op.startswith('ds_swizzle'):
            self.kind = 'ds'; self.wr = R(0); self.rd = sum((R(i) for i in range(1, len(clean))), [])
        elif op.startswith('ds_'):
            self.kind = 'ds'; self.rd = sum((R(i) for i in range(0, len(clean))), [])
        elif op.startswith('buffer_load'):
            self.kind = 'vmem'
            if ' lds' in (' ' + mods + ' ') or mods.strip().endswith('lds'):
                self.dma = True
                self.rd = sum((R(i) for i in range(0, len(clean))), []) + [('s', 'm0')]
            else:
                self.wr = R(0); self.rd = sum((R(i) for i in range(1, len(clean))), [])
        elif op.startswith('buffer_store'):
            self.kind = 'vmem'; self.store = R(0); self.rd = sum((R(i) for i in range(0, len(clean))), [])
        elif op.startswith('global_load_lds'):
            self.kind = 'vmem'; self.dma = True
            self.rd = sum((R(i) for i in range(0, len(clean))), []) + [('s', 'm0')]
        elif op.startswith('global_load'):
            self.kind = 'vmem'; self.wr = R(0); self.rd = sum((R(i) for i in range(1, len(clean))), [])
        elif op.startswith('global_store'):
            self.kind = 'vmem'; self.store = R(1); self.rd = sum((R(i) for i in range(0, len(clean))), [])
        elif op.startswith(('global_atomic', 'buffer_atomic')):
            self.kind = 'vmem'; self.rd = sum((R(i) for i in range(0, len(clean))), [])
            if 'sc0' in mods: self.wr = R(0)
        elif op.startswith(('buffer_wbl2', 'buffer_inv')):
            self.kind = 'vmem'
        elif op.startswith('s_'):
            self.kind = 'salu'
            if op.startswith(('s_cmp', 's_cbranch', 's_branch', 's_waitcnt', 's_barrier', 's_nop', 's_endpgm', 's_setprio', 's_sleep', 's_bitcmp')):
                self.rd = sum((R(i) for i in range(0, len(clean))), [])
            else:
                self.wr = R(0); self.rd = sum((R(i) for i in range(1, len(clean))), [])
                if 'saveexec' in op: self.wr += [('s', 'exec')]
        else:
            raise ValueError('unknown instruction ' + text)
    def states(self):
        if self.op == 's_nop': return int(self.ops[0], 0) + 1
        return 1 if self.op else 0

def check_hazards(lines, name=''):
    seq = [i for i in lines if i.op]
    probs = []
    n = len(seq)
    for i, p in enumerate(seq):
        dist = 0
        for j in range(i + 1, n):
            c = seq[j]
            need = 0; why = ''
            W = set(p.wr);
            def ov(a, b): return bool(set(a) & set(b))
            if p.kind == 'valu':
                vw = [r for r in p.wr if r[0] in 'va']
                sw = [r for r in p.wr if r[0] == 's']
                if c.kind == 'mfma' and ov(vw, c.rd): need, why = 2, 'VALU->MFMA'
                if p.op.startswith(TRANS) and c.kind == 'valu' and not c.op.startswith(TRANS) and (ov(vw, c.rd)): need, why = max(need, 1), 'trans->valu'
                if c.op.startswith('v_permlane') and ov(vw, c.rd): need, why = max(need, 2), 'VALU->permlane'
                if c.op in ('v_readfirstlane_b32', 'v_readlane_b32') and ov(vw, c.rd): need, why = max(need, 1), 'VALU->readlane'
                if 'dpp' in c.op or 'quad_perm' in c.mods or 'row_' in c.mods:
                    if ov(vw, c.rd): need, why = max(need, 2), 'VALU->DPP'
                if sw and c.kind == 'vmem' and ov(sw, c.rd): need, why = max(need, 5), 'VALUsgpr->VMEM'
                if sw and c.kind == 'valu' and (ov(sw, c.rd)): need, why = max(need, 2), 'VALUsgpr->VALU'
                if p.op.startswith('v_dot') and c.kind in ('valu', 'mfma', 'vmem', 'ds'):
                    same = c.op == p.op
                    if ov(vw, c.rd) or ov(vw, c.wr):
                        if same:
                            ab = _regs(c.ops[1]) + _regs(c.ops[2])
                            if ov(vw, ab): need, why = max(need, 3), 'dot->dot AB'
                        else: need, why = max(need, 3), 'dot->other'
                if ('sdwa' in p.op or 'op_sel' in p.mods and not p.op.startswith('v_pk')) and c.kind == 'valu' and ov(vw, c.rd): need, why = max(need, 1), 'sdwa->valu'
            if p.kind == 'mfma':
                D = p.wr
                big = {4: 8, 8: 12}[p.passes]
                if c.kind == 'mfma':
                    if ov(D, c.A + c.B): need, why = big, 'MFMA D->A/B'
                    elif ov(D, c.C):
                        if c.C == D and c.passes == p.passes: need = 0
                        else: need, why = {4: 6, 8: 10}[p.passes], 'MFMA D->C overlap'
                    elif ov(D, c.wr): need, why = max(need, 0), ''
                elif c.kind in ('valu', 'vmem', 'ds'):
                    if ov(D, c.rd) or ov(D, c.wr): need, why = big, 'MFMA D->VALU/mem'
                    if c.kind == 'valu' and ov(p.C, c.wr): need, why = max(need, {4: 3, 8: 7}[p.passes]), why or 'MFMA C WAR'
            if p.kind == 'salu' and ('s', 'm0') in p.wr and getattr(c, 'dma', False): need, why = max(need, 1), 'M0->DMA'
            if p.kind == 'vmem' and getattr(p, 'store', None) and len(p.store) >= 3:
                if c.kind in ('valu',) and ov(p.store, c.wr): need, why = max(need, 2), 'store WAR'
                elif ov(p.store, c.wr): need, why = max(need, 1), 'store WAR'
            if need > dist:
                probs.append(f'{name}: hazard {why}: need {need} have {dist}: [{p.text.strip()}] -> [{c.text.strip()}]')
            dist += c.states()
            if dist >= 20: break
    return probs

class Asm:
    def __init__(self):
        self.lines = []
    def __call__(self, text):
        for t in text.split('\n'):
            if t.strip():
                self.lines.append(Ins(t.strip()))
    def text(self):
        out = []
        for i in self.lines:
            out.append(i.text if (i.label or i.directive) else '  ' + i.text)
        return '\n'.join(out) + '\n'

def vr(base, n=1, k='v'):
    return f'{k}{base}' if n == 1 else f'{k}[{base}:{base+n-1}]'

def kernel_wrap(name, body_text, vgpr, accum, sgpr=102):
    return f""".text
.globl {name}
.p2align 8
.type {name},@function
{name}:
{body_text}.section .rodata,"a"
.p2align 6
.amdhsa_kernel {name}
  .amdhsa_next_free_vgpr {vgpr}
  .amdhsa_next_free_sgpr {sgpr}
  .amdhsa_accum_offset {accum}
  .amdhsa_group_segment_fixed_size 0
  .amdhsa_kernarg_size 80
  .amdhsa_user_sgpr_count 2
  .amdhsa_user_sgpr_kernarg_segment_ptr 1
  .amdhsa_system_sgpr_workgroup_id_x 1
.end_amdhsa_kernel
"""

class Prog:
    def __init__(self):
        self.items = []
    def add(self, text, tag=None):
        for t in text.split('\n'):
            if t.strip():
                self.items.append(('i', t.strip(), tag))
    __call__ = add
    def waitl(self, tag): self.items.append(('wl', tag, None))
    def waitv(self, tag): self.items.append(('wv', tag, None))
    def waitlv(self, tl, tv): self.items.append(('wlv', tl, tv))
    def extend(self, items): self.items.extend(items)
    def resolve(self):
        out = []
        ds = []; vm = []
        ds_done = 0; vm_done = 0
        def cnt(lst, tag, mx, what):
            idx = max(i for i, t in enumerate(lst) if t == tag)
            n = len(lst) - 1 - idx
            return idx + 1, n
        for it in self.items:
            if it[0] == 'i':
                ins = Ins(it[1])
                if ins.kind == 'ds': ds.append(it[2])
                elif ins.kind == 'vmem': vm.append(it[2])
                elif ins.op.startswith('s_load') or ins.op.startswith('s_memtime'): ds.append('SMEM')
                if ins.op == 's_waitcnt':
                    m = re.search(r'lgkmcnt\((\d+)\)', it[1]);
                    if m: ds_done = max(ds_done, len(ds) - int(m.group(1)))
                    m = re.search(r'vmcnt\((\d+)\)', it[1]);
                    if m: vm_done = max(vm_done, len(vm) - int(m.group(1)))
                out.append(ins)
            else:
                parts = []
                tl = it[1] if it[0] in ('wl', 'wlv') else None
                tv = it[1] if it[0] == 'wv' else (it[2] if it[0] == 'wlv' else None)
                if tv is not None:
                    done, n = cnt(vm, tv, 63, 'vm')
                    if done > vm_done:
                        n = min(n, 63); vm_done = len(vm) - n
                        parts.append(f'vmcnt({n})')
                if tl is not None:
                    done, n = cnt(ds, tl, 15, 'ds')
                    if done > ds_done:
                        assert 'SMEM' not in ds[ds_done:], 'SMEM outstanding with counted lgkm wait'
                        n = min(n, 15); ds_done = len(ds) - n
                        parts.append(f'lgkmcnt({n})')
                if parts: out.append(Ins('s_waitcnt ' + ' '.join(parts)))
        return out

def lines_text(lines):
    return '\n'.join(i.text if (i.label or i.directive) else '  ' + i.text for i in lines) + '\n'

def interleave(mfmas, fillers, per_gap=None):
    out = []
    n = len(mfmas); f = len(fillers); pos = 0
    for i, m in enumerate(mfmas):
        out.extend(m)
        tgt = (f * (i + 1) + n - 1) // n if per_gap is None else min(f, pos + per_gap[i])
        if i == n - 1: tgt = f
        out.extend(fillers[pos:tgt]); pos = max(pos, tgt)
    return out
def I(text, tag=None): return ('i', text, tag)
def WL(tag): return ('wl', tag, None)
def WV(tag): return ('wv', tag, None)
```

```python
from asmlib import *
import struct
def f2u(x): return struct.unpack('<I', struct.pack('<f', x))[0]
LOG2E = 1.4426950408889634
QF, KF, VF, AF = 0x0, 0x200000, 0x400000, 0x800000
WS_BYTES = 0x1200000
NKS = 144

def gen_k1(name, xcd_rb=4):
    P = Prog()
    vL, vWq, vWg, vWu, vNegM, vRq, vR, vTg, vS2, vSt, vStV = 1, 2, 3, 4, 5, 6, 7, 8, 9, 10, 11
    vAd = 12
    vT = 24
    accB = 48
    X = 128
    accA = 0
    Wf = 80
    sX, sWq, sW1, sW3, sWS = 8, 12, 16, 20, 24
    SS = [34816, 0, 6144, 12288, 18432, 24576]
    REG = 40960
    P(f'''s_cmp_ge_u32 s2, 256
s_cbranch_scc1 {name}_end
s_load_dwordx4 s[44:47], s[0:1], 0
s_load_dwordx4 s[48:51], s[0:1], 32
s_load_dwordx2 s[52:53], s[0:1], 72
v_lshrrev_b32 v2, 6, v0
v_and_b32 v{vL}, 63, v0
s_and_b32 s3, s2, 7
v_readfirstlane_b32 s28, v2
s_lshr_b32 s4, s2, 3''')
    if xcd_rb == 4:
        P('''s_lshr_b32 s29, s3, 1
s_lshl_b32 s29, s29, 2
s_and_b32 s5, s4, 3
s_add_u32 s29, s29, s5
s_and_b32 s30, s3, 1
s_lshl_b32 s30, s30, 3
s_lshr_b32 s5, s4, 2
s_add_u32 s30, s30, s5''')
    elif xcd_rb == 8:
        P('''s_lshr_b32 s29, s3, 2
s_lshl_b32 s29, s29, 3
s_and_b32 s5, s4, 7
s_add_u32 s29, s29, s5
s_and_b32 s30, s3, 3
s_lshl_b32 s30, s30, 2
s_lshr_b32 s5, s4, 3
s_add_u32 s30, s30, s5''')
    elif xcd_rb == 2:
        P('''s_lshl_b32 s29, s3, 1
s_and_b32 s5, s4, 1
s_add_u32 s29, s29, s5
s_lshr_b32 s30, s4, 1''')
    P(f'''v_lshrrev_b32 v52, 4, v{vL}
v_and_b32 v53, 15, v{vL}
v_xor_b32 v53, v53, v52
v_lshlrev_b32 v53, 4, v53
v_lshl_add_u32 v48, v52, 10, v53
s_mul_i32 s31, s28, {REG}
s_lshl_b32 s6, s29, 2
s_add_u32 s6, s6, s28
s_lshl_b32 s32, s6, 15
s_add_u32 s33, s32, 16384''')
    for q in range(1, 4):
        P(f'v_xor_b32 v{48+q}, {q*64 + q*4096}, v48')
    P(f'''v_lshrrev_b32 v52, 2, v{vL}
v_and_b32 v53, 3, v{vL}
v_lshlrev_b32 v53, 4, v53
v_mul_u32_u24 v{vWq}, 3072, v52
v_mul_u32_u24 v{vWg}, 3584, v52
v_add_u32 v{vWq}, v{vWq}, v53
v_add_u32 v{vWg}, v{vWg}, v53
v_xor_b32 v{vWu}, 32, v{vWg}
s_and_b32 s7, s30, 1           ; parity
s_mul_i32 s34, s30, 224
s_mul_i32 s5, s28, 57344
s_add_u32 s34, s34, s5         ; 224g + w*16*3584
s_mul_i32 s4, s7, 160
s_add_u32 s35, s34, s4
s_mul_i32 s4, s7, 96
s_add_u32 s34, s34, 64
s_sub_u32 s34, s34, s4
s_mul_i32 s36, s28, 49152
s_lshl_b32 s4, s30, 6
s_add_u32 s36, s36, s4
s_waitcnt lgkmcnt(0)
s_mov_b32 s{sX}, s44
s_mov_b32 s{sX+1}, s45
s_mov_b32 s{sX+2}, 0x200000
s_mov_b32 s{sX+3}, 0x20000
s_mov_b32 s{sW1}, s48
s_mov_b32 s{sW1+1}, s49
s_mov_b32 s{sW1+2}, {512*3584}
s_mov_b32 s{sW1+3}, 0x20000
s_mov_b32 s{sW3}, s50
s_mov_b32 s{sW3+1}, s51
s_mov_b32 s{sW3+2}, {512*3584}
s_mov_b32 s{sW3+3}, 0x20000''')
    for cb in range(4):
        for rq in range(8):
            P(f's_add_u32 m0, s31, {cb*8192 + rq*1024 - cb*256}')
            if cb == 0 and rq < 8:
                extra = [f's_mov_b32 s{sWq}, s46', f's_mov_b32 s{sWq+1}, s47', f's_mov_b32 s{sWq+2}, {512*3072}', f's_mov_b32 s{sWq+3}, 0x20000',
                         f's_mov_b32 s{sWS}, s52', f's_mov_b32 s{sWS+1}, s53', f's_mov_b32 s{sWS+2}, {WS_BYTES}', f's_mov_b32 s{sWS+3}, 0x20000'][rq]
                P(extra)
            else:
                P('s_nop 0')
            P(f'buffer_load_dwordx4 v{48+(rq&3)}, s[{sX}:{sX+3}], s{32+(rq>>2)} offen offset:{cb*256} lds', tag=f'x{cb}')
    def dma_group(GG):
        ss = SS[GG % 6]
        it = []
        def one(m0off, v, srd, so, off):
            if m0off is not None:
                it.append(I(f's_add_u32 m0, s31, {m0off}'))
                it.append(I('s_nop 0'))
            it.append(I(f'buffer_load_dwordx4 v{v}, s[{srd}:{srd+3}], s{so} offen offset:{off} lds', f'w{GG}'))
        if GG < 8:
            for seg in range(3):
                one(ss + seg*1024 - seg*64, vWg, sW1, 34, seg*64)
                one(ss + 3072 + seg*1024 - seg*64, vWu, sW3, 34, seg*64)
            it.append(I(f's_add_u32 s34, s34, {4*57344}'))
        else:
            one(ss, vWg, sW1, 35, 0)
            one(ss + 3072, vWu, sW3, 35, 0)
            one(ss + 1024, vWq, sWq, 36, 0)
            one(None, vWq, sWq, 36, 1024)
            one(ss + 2048, vWq, sWq, 36, 2048)
            it.append(I(f's_add_u32 s35, s35, {4*57344}'))
            it.append(I(f's_add_u32 s36, s36, {4*49152}'))
        return it
    def strip_nops(items, other):
        out = []
        other = list(other)
        for it in items:
            if it[1] == 's_nop 0' and other:
                out.append(other.pop(0))
            else:
                out.append(it)
        return out + other
    P.extend(dma_group(0))
    P(f'''v_and_b32 v52, 31, v{vL}
v_lshrrev_b32 v53, 5, v{vL}         ; h
v_and_b32 v54, 15, v{vL}
v_xor_b32 v54, v54, v53
v_lshlrev_b32 v54, 4, v54
v_lshl_add_u32 v54, v52, 8, v54
v_add_u32 v56, s31, v54
s_mov_b32 s37, 0x00003f80
s_mov_b32 s38, 0x3f800000
s_mov_b32 s39, 0x3f803f80''')
    for j in range(1, 8):
        P(f'v_xor_b32 v{56+j}, {j<<5}, v56')
    for j in range(8):
        P(f'v_mov_b32 v{64+j}, 0')
    P(f'''v_lshrrev_b32 v72, 4, v{vL}
v_and_b32 v72, 1, v72               ; cs
v_bfe_u32 v73, v{vL}, 2, 2          ; r
v_lshl_add_u32 v73, v53, 3, v73     ; 8h+r
v_lshlrev_b32 v73, 6, v73
v_and_b32 v74, 3, v{vL}
v_lshl_add_u32 v73, v74, 3, v73
v_lshl_add_u32 v{vT+20}, v72, 5, v73
v_mul_u32_u24 v72, 3072, v72
v_add_u32 v{vT+21}, v{vT+20}, v72
s_lshl_b32 s4, s7, 5
v_xor_b32 v{vAd}, s4, v{vT+21}
s_lshl_b32 s5, s7, 10
v_xor_b32 v{vAd+4}, 32, v{vAd}
v_add_u32 v{vAd+4}, s5, v{vAd+4}''')
    for j in range(1, 4):
        P(f'v_add_u32 v{vAd+j}, {j*REG}, v{vAd}')
        P(f'v_add_u32 v{vAd+4+j}, {j*REG}, v{vAd+4}')
    P(f'''v_lshlrev_b32 v{vSt}, 4, v{vL}
v_and_b32 v72, 15, v{vL}
v_lshlrev_b32 v72, 4, v72
v_lshl_add_u32 v72, v53, 8, v72
v_bfe_u32 v73, v{vL}, 4, 1
v_lshl_add_u32 v{vStV}, v73, 16, v72
s_mul_i32 s40, s6, {NKS*1024}
s_mul_i32 s4, s30, {7*1024}
s_add_u32 s40, s40, s4
s_add_u32 s40, s40, {AF + 32*1024}
s_mul_i32 s4, s7, {5*1024}
s_add_u32 s41, s40, s4
s_lshl_b32 s4, s7, 11
s_add_u32 s40, s40, 2048
s_sub_u32 s40, s40, s4
s_lshl_b32 s42, s30, 17
s_lshl_b32 s4, s6, 10
s_add_u32 s42, s42, s4          ; (2g*64 + rowtile)*1024
s_add_u32 s43, s42, {KF}
s_add_u32 s44, s42, {VF}
s_add_u32 s45, s42, {QF + 65536}
s_add_u32 s46, s43, 65536''')
    def stats(cb):
        it = []
        n = 0
        for s in range(8):
            for r in range(4):
                x = X + (cb*8 + s)*4 + r
                it.append(I(f'v_dot2c_f32_bf16 v{64 + (n&3)}, s39, v{x}'))
                it.append(I(f'v_dot2c_f32_bf16 v{68 + (n&3)}, v{x}, v{x}'))
                n += 1
        return it
    for cb in range(4):
        P.waitv(f'x{cb}')
        for s in range(8):
            ks = cb*8 + s
            P(f'ds_read_b128 v[{X+ks*4}:{X+ks*4+3}], v{56+s} offset:{cb*8192}', tag=f'xr{cb}')
        if cb > 0:
            P.waitl(f'xr{cb-1}')
            P.extend(stats(cb-1))
    P.waitl('xr3')
    dm = []
    for GG in range(1, 6): dm += dma_group(GG)
    P.extend(strip_nops(dm, stats(3)))
    P(f'''s_nop 2
v_add_f32 v64, v64, v65
v_add_f32 v66, v66, v67
v_add_f32 v68, v68, v69
v_add_f32 v70, v70, v71
v_add_f32 v64, v64, v66
v_add_f32 v68, v68, v70
v_mov_b32 v65, v64
v_mov_b32 v69, v68
s_nop 1
v_permlane32_swap_b32 v64, v65
v_permlane32_swap_b32 v68, v69
v_add_f32 v64, v64, v65
v_add_f32 v68, v68, v69
v_mul_f32 v64, {hex(f2u(1/512))}, v64          ; mean
v_mul_f32 v68, {hex(f2u(1/512))}, v68          ; E[x^2]
v_fma_f32 v68, -v64, v64, v68                  ; var
v_max_f32 v68, 0, v68
v_cvt_pk_bf16_f32 v65, v64, v68
v_lshlrev_b32 v{vNegM}, 16, v65
v_xor_b32 v{vNegM}, 0x80000000, v{vNegM}
v_and_b32 v68, 0xffff0000, v65
v_add_f32 v68, {hex(f2u(1e-5))}, v68
v_cvt_pk_bf16_f32 v68, v68, v68
v_and_b32 v68, 0xffff0000, v68
v_sqrt_f32 v68, v68
s_nop 0
v_cvt_pk_bf16_f32 v68, v68, v68
v_and_b32 v68, 0xffff0000, v68
v_rcp_f32 v{vR}, v68
v_mul_f32 v{vS2}, v68, v68
v_and_b32 v52, 31, v{vL}
v_lshlrev_b32 v52, 2, v52
v_add_u32 v52, s31, v52
v_mul_f32 v{vRq}, {hex(f2u(0.25*LOG2E))}, v{vR}
v_mul_f32 v{vTg}, {hex(f2u(-LOG2E))}, v{vR}''')
    P(f'ds_write_b32 v52, v{vR} offset:32768', tag='rs')
    def norm(ks):
        it = []
        t = vT
        xs = [X + ks*4 + r for r in range(4)]
        for r in range(4):
            it.append(I(f'v_dot2_f32_bf16 v{t+2*r}, v{xs[r]}, s37, v{vNegM}'))
            it.append(I(f'v_dot2_f32_bf16 v{t+2*r+1}, v{xs[r]}, s38, v{vNegM}'))
        for r in range(4):
            it.append(I(f'v_cvt_pk_bf16_f32 v{xs[r]}, v{t+2*r}, v{t+2*r+1}'))
        return it
    def reads(t):
        GG = t >> 2; j = t & 3; ss = SS[GG % 6]
        it = []
        for a in range(5):
            w = Wf + (t & 1)*20 + a*4
            if t < 32:
                base = vAd + (a & 1)*4 + j; off = ss + (a >> 1)*1024
            else:
                if a < 2: base = vAd + a*4 + j; off = ss
                else: base = vAd + 8 + j; off = ss + [1024, 2048, 4096][a-2]
            it.append(I(f'ds_read_b64_tr_b16 a[{w}:{w+1}], v{base} offset:{off}', f'r{t}_{a}'))
            it.append(I(f'ds_read_b64_tr_b16 a[{w+2}:{w+3}], v{base} offset:{off+256}', f'r{t}_{a}'))
        return it
    def mfma(t, a):
        ks = t & 31
        w = Wf + (t & 1)*20 + a*4
        xf = f'v[{X+ks*4}:{X+ks*4+3}]'; wf = f'a[{w}:{w+3}]'
        acc = f'a[{accA+a*16}:{accA+a*16+15}]' if t < 32 else f'v[{accB+a*16}:{accB+a*16+15}]'
        c = '0' if ks == 0 else acc
        if t >= 32 and a == 4: return I(f'v_mfma_f32_32x32x16_bf16 {acc}, {xf}, {wf}, {c}')
        return I(f'v_mfma_f32_32x32x16_bf16 {acc}, {wf}, {xf}, {c}')
    def glu_epi(base, agpr, sreg, off, tb):
        it = []
        o = tb + 6
        for p in range(4):
            j = 2*p
            if agpr:
                g0, g1, u0, u1 = tb, tb+1, tb+2, tb+3
                it += [I(f'v_accvgpr_read_b32 v{g0}, a{base+j}'), I(f'v_accvgpr_read_b32 v{g1}, a{base+j+1}'),
                       I(f'v_accvgpr_read_b32 v{u0}, a{base+j+8}'), I(f'v_accvgpr_read_b32 v{u1}, a{base+j+9}')]
            else:
                g0, g1, u0, u1 = base+j, base+j+1, base+j+8, base+j+9
            t0, t1 = tb+4, tb+5
            it += [I(f'v_mul_f32 v{t0}, v{g0}, v{vTg}'), I(f'v_mul_f32 v{t1}, v{g1}, v{vTg}'),
                   I(f'v_exp_f32 v{t0}, v{t0}'), I(f'v_exp_f32 v{t1}, v{t1}'),
                   I(f'v_mul_f32 v{u0}, v{g0}, v{u0}'),
                   I(f'v_fma_f32 v{t0}, v{t0}, v{vS2}, v{vS2}'), I(f'v_fma_f32 v{t1}, v{t1}, v{vS2}, v{vS2}'),
                   I(f'v_rcp_f32 v{t0}, v{t0}'), I(f'v_rcp_f32 v{t1}, v{t1}'),
                   I(f'v_mul_f32 v{u1}, v{g1}, v{u1}'),
                   I(f'v_mul_f32 v{u0}, v{u0}, v{t0}'), I(f'v_mul_f32 v{u1}, v{u1}, v{t1}'),
                   I(f'v_cvt_pk_bf16_f32 v{o+p}, v{u0}, v{u1}')]
        it.append(I(f'buffer_store_dwordx4 v[{o}:{o+3}], v{vSt}, s[{sWS}:{sWS+3}], s{sreg} offen offset:{off}', 'st'))
        return it
    P.extend(norm(0))
    P.extend(norm(1))
    P.waitv('w0')
    P('s_barrier')
    P.extend(reads(0))
    epiA = []
    for a in range(5):
        if a == 4: epiA.append(I('s_add_u32 s40, s40, 4096'))
        epiA += glu_epi(accA + a*16, True, 40, (a % 4)*1024, vT + 8)
    epos = 0
    for t in range(64):
        pre = []
        fill = []
        nxt = t + 1
        newgroup = (nxt % 4 == 0) and nxt < 64
        if newgroup:
            GG = nxt >> 2
            pre += [('wlv', f'r{t}_4', f'w{GG}'), I('s_barrier')]
        rd = reads(nxt) if nxt < 64 else []
        other = []
        if nxt + 1 < 32: other += norm(nxt + 1)
        if t == 30:
            pass
        if t == 31:
            sw = [I(f'v_mov_b32 v{vAd}, v{vT+21}'), I(f'v_xor_b32 v{vAd+4}, 32, v{vT+21}'), I(f'v_mov_b32 v{vAd+8}, v{vT+20}')]
            for j in range(1, 4):
                sw += [I(f'v_add_u32 v{vAd+j}, {j*REG}, v{vAd}'), I(f'v_add_u32 v{vAd+4+j}, {j*REG}, v{vAd+4}'), I(f'v_add_u32 v{vAd+8+j}, {j*REG}, v{vAd+8}')]
            rd = sw[:3] + rd
            other += sw[3:]
        if t >= 33:
            tgt = len(epiA) if t >= 62 else (len(epiA) * (t - 32)) // 30
            other += epiA[epos:tgt]; epos = tgt
        if t == 63:
            other += [I(f'v_lshrrev_b32 v{vT+22}, 5, v{vL}'), I(f'v_lshlrev_b32 v{vT+22}, 4, v{vT+22}'), I(f'v_add_u32 v{vT+22}, s31, v{vT+22}')]
            for q in range(4):
                other.append(I(f'ds_read_b128 v[{X+4*q}:{X+4*q+3}], v{vT+22} offset:{32768+q*32}', 'rsr'))
        if newgroup and (nxt >> 2) + 5 <= 15:
            other = strip_nops(dma_group((nxt >> 2) + 5), other)
        ms = []
        for a in range(5):
            m = []
            if a == 0: m += pre + [WL(f'r{t}_2')]
            if a == 3: m += [WL(f'r{t}_4')]
            m.append(mfma(t, a))
            ms.append(m)
        total = len(rd) + len(other)
        rdq = list(rd); oq = list(other)
        nr = [3, 3, 2, 2, 0] if len(rd) == 10 else [4, 4, 3, 2, 0]
        done = 0
        for a in range(5):
            P.extend(ms[a])
            tgt = (total * (a + 1) + 4) // 5
            k = min(nr[a], len(rdq))
            for _ in range(k): P.extend([rdq.pop(0)]); done += 1
            while oq and (done < tgt or a == 4):
                P.extend([oq.pop(0)]); done += 1
        assert not rdq and not oq
    P('s_nop 7')
    P.extend(glu_epi(accB, False, 41, 0, vT + 8))
    P.extend(glu_epi(accB + 16, False, 41, 1024, vT + 8))
    def lin_epi(base, scale, sregs, voff, offs):
        for r in range(16):
            P(f'v_mul_f32 v{base+r}, v{base+r}, v{scale(r)}')
        for r in range(8):
            P(f'v_cvt_pk_bf16_f32 v{base+r}, v{base+2*r}, v{base+2*r+1}')
        for hh in range(2):
            P(f'buffer_store_dwordx4 v[{base+4*hh}:{base+4*hh+3}], v{voff}, s[{sWS}:{sWS+3}], s{sregs[hh]} offen offset:{offs[hh]}', tag='st')
    lin_epi(accB + 32, lambda r: vRq, (42, 45), vSt, (0, 0))
    lin_epi(accB + 48, lambda r: vR, (43, 46), vSt, (0, 0))
    P.waitl('rsr')
    lin_epi(accB + 64, lambda r: X + r, (44, 44), vStV, (0, 512))
    P(f'{name}_end:')
    P('s_endpgm')
    lines = P.resolve()
    probs = check_hazards(lines, name)
    return kernel_wrap(name, lines_text(lines), 256 + 120, 256), probs

if __name__ == '__main__':
    t, p = gen_k1('k1_kernel')
    print('\n'.join(p))
    open('k1.s', 'w').write('.amdgcn_target "amdgcn-amd-amdhsa--gfx950"\n' + t)
```

```python
from asmlib import *
from k1 import QF, KF, VF, AF, WS_BYTES, NKS, f2u

def gen_k2(name):
    A = Asm()
    Q, Kb, Vb, S, Pb, O, C = 8, 12, 20, 36, 68, 84, 100
    mf = lambda d, a, b, c: f'v_mfma_f32_32x32x16_bf16 v[{d}:{d+15}], v[{a}:{a+3}], v[{b}:{b+3}], {c}'
    A(f'''s_cmp_ge_u32 s2, 256
s_cbranch_scc1 {name}_end
s_load_dwordx2 s[4:5], s[0:1], 72
v_lshrrev_b32 v2, 6, v0
v_and_b32 v1, 63, v0
s_and_b32 s3, s2, 7
v_readfirstlane_b32 s28, v2
s_lshl_b32 s3, s3, 2
s_bfe_u32 s6, s2, 0x20003
s_add_u32 s29, s3, s6            ; head
s_lshr_b32 s30, s2, 5
v_lshlrev_b32 v2, 4, v1          ; lane*16
s_lshl_b32 s31, s30, 3
s_add_u32 s31, s31, s28          ; q tile
s_lshl_b32 s32, s29, 16          ; head*64K
s_lshl_b32 s33, s31, 10
s_add_u32 s33, s33, s32          ; Q offset
s_lshl_b32 s34, s28, 10          ; wave*1024
s_add_u32 s35, s32, s34
s_add_u32 s36, s35, {VF}
s_add_u32 s35, s35, {KF}
s_mov_b32 m0, s34
s_waitcnt lgkmcnt(0)
s_mov_b32 s8, s4
s_mov_b32 s9, s5
s_mov_b32 s10, {WS_BYTES}
s_mov_b32 s11, 0x20000
buffer_load_dwordx4 v[{Q}:{Q+3}], v2, s[8:11], s33 offen
buffer_load_dwordx4 v2, s[8:11], s35 offen lds''')
    def dma(kind, c):
        base = 0 if kind == 'K' else 65536
        sreg = 35 if kind == 'K' else 36
        A(f's_add_u32 m0, s34, {base + c*8192}')
        A(f's_add_u32 s37, s{sreg}, {c*8192}')
        A(f'buffer_load_dwordx4 v2, s[8:11], s37 offen lds')
    dma('V', 0); dma('K', 1)
    for c in range(1, 8):
        dma('V', c)
        if c < 7: dma('K', c + 1)
    A(f'''v_mov_b32 v{S}, 0x3f803f80
v_mov_b32 v{S+1}, 0x3f803f80
v_mov_b32 v{S+2}, 0x3f803f80
v_mov_b32 v{S+3}, 0x3f803f80
v_lshlrev_b32 v5, 4, v0
v_add_u32 v5, 131072, v5
ds_write_b128 v5, v[{S}:{S+3}]
v_and_b32 v5, 15, v1
v_lshlrev_b32 v5, 4, v5
v_lshrrev_b32 v6, 5, v1
v_lshl_add_u32 v5, v6, 8, v5
v_bfe_u32 v6, v1, 4, 1
v_lshl_add_u32 v7, v6, 16, v5
v_add_u32 v7, 65536, v7
v_xor_b32 v6, 1, v6
v_lshlrev_b32 v4, 13, v6
s_mov_b32 s40, 0
s_mov_b32 s41, 7''')
    for r in range(16): A(f'v_mov_b32 v{C+r}, 0')
    A('s_waitcnt vmcnt(13) lgkmcnt(0)')
    A('s_barrier')
    A(f'{name}_restart:')
    A(f'''v_mov_b32 v5, v2
v_mov_b32 v3, v7
ds_read_b128 v[{Kb}:{Kb+3}], v5
ds_read_b128 v[{Kb+4}:{Kb+7}], v5 offset:1024''')
    for r in range(16): A(f'v_mov_b32 v{O+r}, 0')
    for r in range(8): A(f'v_mov_b32 v{Pb+8+r}, 0'); A(f'v_mov_b32 v{Vb+8+r}, 0')
    A('s_mov_b32 s38, 8')
    A('s_waitcnt lgkmcnt(1)')
    A(mf(S, Kb, Q, f'v[{C}:{C+15}]'))
    A('s_nop 7')
    A('.p2align 6')
    A(f'{name}_loop:')
    body_start = len(A.lines)
    for t in range(8):
        Sc = S + 16*(t & 1); Sn = S + 16*((t+1) & 1)
        Kn = Kb + 4*((t+1) & 1); Kl = Kb + 4*(t & 1)
        Vp = Vb + 8*((t+1) & 1); Vl = Vb + 8*(t & 1)
        Pc = Pb + 8*(t & 1); Pp = Pb + 8*((t+1) & 1)
        ex = lambda i: A(f'v_exp_f32 v{Sc+i}, v{Sc+i}')
        cv = lambda i: A(f'v_cvt_pk_bf16_f32 v{Pc+i}, v{Sc+2*i}, v{Sc+2*i+1}')
        A('s_waitcnt lgkmcnt(0)')
        A(mf(Sn, Kn, Q, f'v[{C}:{C+15}]'))
        A(f'ds_read_b128 v[{Kl}:{Kl+3}], v5 offset:{(t+2)*1024}')
        A(f'ds_read_b128 v[{Vl}:{Vl+3}], v3 offset:{t*1024}')
        A(f'ds_read_b128 v[{Vl+4}:{Vl+7}], v3 offset:{t*1024+512}')
        for i in range(0, 5): ex(i)
        cv(0); cv(1)
        A(mf(O, Vp, Pp, f'v[{O}:{O+15}]'))
        for i in range(5, 11): ex(i)
        cv(2); cv(3); cv(4)
        A(mf(O, Vp+4, Pp+4, f'v[{O}:{O+15}]'))
        for i in range(11, 16): ex(i)
        if t == 7:
            A('v_add_u32 v5, 8192, v5')
            A('v_add_u32 v3, v4, v3')
        cv(5); cv(6); cv(7)
    body = A.lines[body_start:]
    A(f'''s_sub_u32 s38, s38, 1
s_cmp_lg_u32 s38, s41
s_cbranch_scc1 {name}_nosync
s_waitcnt vmcnt(0)
s_barrier
{name}_nosync:
s_cmp_lg_u32 s38, 0
s_cbranch_scc1 {name}_loop''')
    tail_start = len(A.lines)
    A('s_waitcnt lgkmcnt(0)')
    A(mf(O, Vb+8, Pb+8, f'v[{O}:{O+15}]'))
    A(mf(O, Vb+12, Pb+12, f'v[{O}:{O+15}]'))
    A(f'''s_mul_i32 s33, s31, {NKS*1024}
s_lshl_b32 s32, s29, 10
s_add_u32 s33, s33, s32
s_add_u32 s33, s33, {AF}
s_mov_b32 s42, {hex(f2u(2.0**-24))}
s_mov_b32 s43, {hex(f2u(2.0**48))}
s_nop 7
v_cmp_le_f32 vcc, s42, v{O+8}
v_cmp_ge_f32 s[44:45], s43, v{O+8}
v_rcp_f32 v6, v{O+8}
s_and_b64 vcc, vcc, s[44:45]
s_cmp_eq_u64 vcc, -1
s_cbranch_scc1 {name}_fin
s_cmp_eq_u32 s40, 0
s_cbranch_scc1 {name}_slow
{name}_fin:''')
    for r in range(8): A(f'v_mul_f32 v{O+r}, v{O+r}, v6')
    for r in range(4): A(f'v_cvt_pk_bf16_f32 v{O+r}, v{O+2*r}, v{O+2*r+1}')
    A(f'buffer_store_dwordx4 v[{O}:{O+3}], v2, s[8:11], s33 offen')
    A(f'{name}_end:')
    A('s_endpgm')
    tail = A.lines[tail_start:]
    slow_start = len(A.lines)
    A(f'''{name}_slow:
s_mov_b32 s40, 1
s_mov_b32 s41, 100
s_mov_b32 s38, 64
v_mov_b32 v5, v2
v_mov_b32 v6, 0xff800000
{name}_mx:
ds_read_b128 v[{Kb}:{Kb+3}], v5
v_add_u32 v5, 1024, v5
s_waitcnt lgkmcnt(0)''')
    A(mf(S, Kb, Q, '0'))
    A('s_nop 15')
    for r in range(0, 16, 2): A(f'v_max3_f32 v6, v{S+r}, v{S+r+1}, v6')
    A(f'''s_sub_u32 s38, s38, 1
s_cmp_lg_u32 s38, 0
s_cbranch_scc1 {name}_mx
v_mov_b32 v3, v6
s_nop 1
v_permlane32_swap_b32 v6, v3
v_max_f32 v6, v6, v3''')
    for r in range(16): A(f'v_sub_f32 v{C+r}, 0, v6')
    A(f's_branch {name}_restart')
    slow = A.lines[slow_start:]
    probs = check_hazards(A.lines[:body_start] + body + body + tail, name) + check_hazards(slow + slow, name + '_slow')
    return kernel_wrap(name, A.text(), 116, 116), probs

if __name__ == '__main__':
    t, p = gen_k2('k2_kernel')
    print('\n'.join(p))
    open('k2.s', 'w').write('.amdgcn_target "amdgcn-amd-amdhsa--gfx950"\n' + t)
```

```python
from asmlib import *
from k1 import QF, KF, VF, AF, WS_BYTES, NKS, f2u

def gen_k3(name, D=12):
    P = Prog()
    vL, vSt, vW, vTr, vXo = 1, 2, 3, 4, 5
    XR = 8
    Wf = 16
    acc = 32
    Af = 96
    sX, sWo, sW2, sWS, sO = 8, 12, 16, 20, 24
    P(f'''s_cmp_ge_u32 s2, 256
s_cbranch_scc1 {name}_end
s_load_dwordx2 s[40:41], s[0:1], 0
s_load_dwordx2 s[42:43], s[0:1], 16
s_load_dwordx4 s[44:47], s[0:1], 48
s_load_dwordx2 s[48:49], s[0:1], 72
v_lshrrev_b32 v2, 6, v0
v_and_b32 v{vL}, 63, v0
s_and_b32 s3, s2, 7
v_readfirstlane_b32 s28, v2
s_lshl_b32 s3, s3, 2
s_bfe_u32 s6, s2, 0x20003
s_add_u32 s29, s3, s6
s_lshr_b32 s30, s2, 5
v_lshlrev_b32 v{vSt}, 4, v{vL}
v_lshrrev_b32 v6, 2, v{vL}
v_and_b32 v7, 3, v{vL}
v_lshlrev_b32 v7, 4, v7
v_lshl_add_u32 v{vW}, v6, 10, v7
s_lshr_b32 s4, s28, 1            ; wi
s_and_b32 s5, s28, 1             ; wj
s_lshl_b32 s6, s29, 1
s_add_u32 s7, s6, s4
s_xor_b32 s31, s7, 1
s_mul_i32 s32, s7, {NKS*1024}
s_mul_i32 s33, s31, {NKS*1024}
s_lshl_b32 s6, s28, 13
s_add_u32 s6, s6, {AF}
s_add_u32 s32, s32, s6
s_add_u32 s33, s33, s6
s_lshl_b32 s34, s28, 17          ; wave*8*16384
s_lshl_b32 s6, s30, 7
s_add_u32 s34, s34, s6
s_mul_i32 s35, s28, {28*16384}
s_add_u32 s35, s35, s6           ; W soffset (w2)
s_mul_i32 s36, s28, {D*2048}
s_mul_i32 s37, s28, {20*1024}
s_add_u32 s37, s37, {24*1024}
s_waitcnt lgkmcnt(0)''')
    def srd(s, lo, size):
        P(f's_mov_b32 s{s}, s{lo}\ns_mov_b32 s{s+1}, s{lo+1}\ns_mov_b32 s{s+2}, {size}\ns_mov_b32 s{s+3}, 0x20000')
    srd(sWS, 48, WS_BYTES); srd(sWo, 42, 512*1024); srd(sW2, 44, 1792*1024); srd(sX, 40, 0x200000); srd(sO, 46, 0x200000)
    def loads(u):
        it = []
        slot = u % D
        a = Af + slot*8
        srdw = sWo if u < 8 else sW2
        sw = 34 if u < 8 else 35
        it.append(I(f's_add_u32 m0, s36, {slot*2048}'))
        it.append(I(f'buffer_load_dwordx4 v[{a}:{a+3}], v{vSt}, s[{sWS}:{sWS+3}], s32 offen offset:{(u%4)*1024}', f'l{u}'))
        it.append(I(f'buffer_load_dwordx4 v{vW}, s[{srdw}:{srdw+3}], s{sw} offen lds', f'l{u}'))
        it.append(I(f's_add_u32 m0, s36, {slot*2048 + 1024 - 64}'))
        it.append(I(f'buffer_load_dwordx4 v[{a+4}:{a+7}], v{vSt}, s[{sWS}:{sWS+3}], s33 offen offset:{(u%4)*1024}', f'l{u}'))
        it.append(I(f'buffer_load_dwordx4 v{vW}, s[{srdw}:{srdw+3}], s{sw} offen offset:64 lds', f'l{u}'))
        it.append(I(f's_add_u32 s{sw}, s{sw}, 16384'))
        if u % 4 == 3:
            it.append(I('s_add_u32 s32, s32, 4096')); it.append(I('s_add_u32 s33, s33, 4096'))
        if u == 7:
            it.append(I('s_add_u32 s32, s32, s37')); it.append(I('s_add_u32 s33, s33, s37'))
        return it
    for u in range(D): P.extend(loads(u))
    P(f'''v_and_b32 v6, 31, v{vL}
v_lshrrev_b32 v7, 5, v{vL}
v_lshlrev_b32 v6, 10, v6
v_lshl_add_u32 v{vXo}, v7, 3, v6
s_lshl_b32 s38, s7, 15
s_lshl_b32 s6, s30, 7
s_add_u32 s38, s38, s6
s_lshl_b32 s6, s5, 6
s_add_u32 s38, s38, s6''')
    for q in range(4):
        P(f'buffer_load_dwordx2 v[{XR+2*q}:{XR+2*q+1}], v{vXo}, s[{sX}:{sX+3}], s38 offen offset:{q*16}', tag='xr')
    P(f'''v_bfe_u32 v6, v{vL}, 2, 2
v_lshl_add_u32 v6, v7, 2, v6
v_lshlrev_b32 v6, 6, v6
v_and_b32 v{vTr}, 3, v{vL}
v_lshl_add_u32 v6, v{vTr}, 3, v6
v_bfe_u32 v{vTr}, v{vL}, 4, 1
v_lshl_add_u32 v6, v{vTr}, 5, v6
s_lshl_b32 s6, s5, 10
s_add_u32 s6, s6, s36
v_add_u32 v{vTr}, s6, v6
v_xor_b32 v6, 1024, v{vTr}
v_lshl_add_u32 v{vXo}, v7, 3, v{vXo}''')
    def reads(u):
        it = []
        slot = u % D
        for j in range(2):
            w = Wf + (u & 1)*8 + j*4
            b = vTr if j == 0 else 6
            it.append(I(f'ds_read_b64_tr_b16 v[{w}:{w+1}], v{b} offset:{slot*2048}', f'r{u}'))
            it.append(I(f'ds_read_b64_tr_b16 v[{w+2}:{w+3}], v{b} offset:{slot*2048+512}', f'r{u}'))
        return it
    P.waitv('l0')
    P.extend(reads(0))
    for u in range(36):
        if u + 1 < 36:
            P.waitv(f'l{u+1}')
            P.extend(reads(u+1))
        P.waitl(f'r{u}')
        a = Af + (u % D)*8
        ms = []
        for T in range(4):
            w = Wf + (u & 1)*8 + (T & 1)*4
            x = a + (T >> 1)*4
            c = '0' if u == 0 else f'v[{acc+T*16}:{acc+T*16+15}]'
            ms.append(I(f'v_mfma_f32_32x32x16_bf16 v[{acc+T*16}:{acc+T*16+15}], v[{w}:{w+3}], v[{x}:{x+3}], {c}'))
        P.extend(ms)
        if u + D < 36: P.extend(loads(u + D))
    P('s_barrier')
    P('s_nop 7')
    for a in range(1, 4):
        P(f's_xor_b32 s6, s28, {a}')
        P(f's_mul_i32 s6, s6, 12288')
        P(f'v_add_u32 v7, s6, v{vSt}')
        for q in range(4):
            P(f'ds_write_b128 v7, v[{acc+a*16+4*q}:{acc+a*16+4*q+3}] offset:{(a-1)*4096+q*1024}', tag='xw')
    P('s_mul_i32 s6, s28, 12288')
    P(f'v_add_u32 v7, s6, v{vSt}')
    for q in range(4):
        P(f'v_lshlrev_b32 v{Wf}, 16, v{XR+2*q}\nv_and_b32 v{Wf+1}, 0xffff0000, v{XR+2*q}\nv_lshlrev_b32 v{Wf+2}, 16, v{XR+2*q+1}\nv_and_b32 v{Wf+3}, 0xffff0000, v{XR+2*q+1}')
        for r in range(4): P(f'v_add_f32 v{acc+4*q+r}, v{acc+4*q+r}, v{Wf+r}')
    P.waitl('xw')
    P('s_barrier')
    for a in range(3):
        for q in range(4):
            P(f'ds_read_b128 v[{Af+a*16+4*q}:{Af+a*16+4*q+3}], v7 offset:{a*4096+q*1024}', tag=f'xr{a}')
    for a in range(3):
        P.waitl(f'xr{a}')
        for r in range(16): P(f'v_add_f32 v{acc+r}, v{acc+r}, v{Af+a*16+r}')
    for r in range(8): P(f'v_cvt_pk_bf16_f32 v{acc+r}, v{acc+2*r}, v{acc+2*r+1}')
    P('s_nop 1')
    for p in range(2):
        P(f'v_permlane32_swap_b32 v{acc+4*p}, v{acc+4*p+2}')
        P(f'v_permlane32_swap_b32 v{acc+4*p+1}, v{acc+4*p+3}')
        P(f'buffer_store_dwordx4 v[{acc+4*p}:{acc+4*p+3}], v{vXo}, s[{sO}:{sO+3}], s38 offen offset:{p*32}')
    P(f'{name}_end:')
    P('s_endpgm')
    lines = P.resolve()
    probs = check_hazards(lines, name)
    nv = Af + D*8
    return kernel_wrap(name, lines_text(lines), nv, nv), probs

if __name__ == '__main__':
    t, p = gen_k3('k3_kernel')
    print('\n'.join(p))
    open('k3.s', 'w').write('.amdgcn_target "amdgcn-amd-amdhsa--gfx950"\n' + t)
```

```python
import sys
from k1 import gen_k1
from k2 import gen_k2
from k3 import gen_k3
HEAD = open('parallel_sum__mha_block__glu_gated_swiglu__prompt.s.ref').read().split('; Override')[0]
def build(path):
    t1, p1 = gen_k1('k1_kernel'); t2, p2 = gen_k2('k2_kernel'); t3, p3 = gen_k3('k3_kernel')
    for p in p1 + p2 + p3: print(p)
    s = HEAD
    s += '; @launch kernel=k1_kernel grid=(256,1,1) block=(256,1,1) lds=163840\n'
    s += '; @launch kernel=k2_kernel grid=(256,1,1) block=(512,1,1) lds=139264\n'
    s += '; @launch kernel=k3_kernel grid=(256,1,1) block=(256,1,1) lds=98304\n'
    s += '.amdgcn_target "amdgcn-amd-amdhsa--gfx950"\n' + t1 + t2 + t3
    open(path, 'w').write(s)
if __name__ == '__main__':
    build(sys.argv[1] if len(sys.argv) > 1 else 'parallel_sum__mha_block__glu_gated_swiglu__prompt.s')
```
